```python
import torch

def _softmax(x, axis=-1):
    return torch.softmax(x, dim=axis)
def _gelu(x):
    return torch.nn.functional.gelu(x, approximate="tanh")
def _silu(x):
    return torch.nn.functional.silu(x)
def _sigmoid(x):
    return torch.sigmoid(x)
def _layernorm(x, axis=-1, eps=1e-5):
    m = x.mean(dim=axis, keepdim=True)
    v = x.var(dim=axis, keepdim=True, unbiased=False)
    return (x - m) / torch.sqrt(v + eps)
def _scatter_add(tgt, idx, src, axis=0):
    return tgt.clone().index_add_(axis, idx, src)
def _segment_sum(src, seg, n):
    out = torch.zeros((n,) + src.shape[1:], dtype=src.dtype)
    return out.index_add_(0, seg, src)
def _pad(x, pw):
    flat = tuple(v for pair in reversed(pw) for v in pair)
    return torch.nn.functional.pad(x, flat)

kernel_name = 'standalone__gqa_block_cached__near_ridge'

def setup_inputs():

    _w = (lambda a: (lambda t: t.to(torch.bfloat16) if t.is_floating_point() else t)(torch.as_tensor(a)))
    B, Sq, D = 8, 48, 1024
    Hq, Hkv, Sk, Dh = 32, 4, 1024, 128
    assert Hq % Hkv == 0, (Hq, Hkv)
    return {
        "x": _w((lambda *s: torch.randn(*s, dtype=torch.bfloat16) * 0.8)(B, Sq, D)),
        "k_cache": _w((lambda *s: torch.randn(*s, dtype=torch.bfloat16) * 0.8)(B, Hkv, Sk, Dh)),
        "v_cache": _w((lambda *s: torch.randn(*s, dtype=torch.bfloat16) * 0.05)(B, Hkv, Sk, Dh)),
        "wq": _w((lambda *s: torch.randn(*s, dtype=torch.bfloat16) * 0.8)(D, Hq * Dh) * (D ** -0.5)),
        "wo": _w((lambda *s: torch.randn(*s, dtype=torch.bfloat16) * 0.05)(Hq * Dh, D) * ((Hq * Dh) ** -0.5)),
    }

def reference(x, k_cache, v_cache, wq, wo):
    B, Sq, D = x.shape
    Hq, Dh = 32, 128
    Hkv = k_cache.shape[1]
    rep = Hq // Hkv
    q = (lambda x, *d: x.permute(*d))((x @ wq).reshape(B, Sq, Hq, Dh), 0, 2, 1, 3)
    k = (lambda x, n, axis: torch.repeat_interleave(x, n, dim=axis))(k_cache, rep, axis=1)
    v = (lambda x, n, axis: torch.repeat_interleave(x, n, dim=axis))(v_cache, rep, axis=1)
    scores = torch.einsum("bhqd,bhkd->bhqk", q, k) * (Dh ** -0.5)
    p = _softmax(scores, axis=-1)
    o = torch.einsum("bhqk,bhkd->bhqd", p, v)
    return (lambda x, *d: x.permute(*d))(o, 0, 2, 1, 3).reshape(B, Sq, Hq * Dh) @ wo
```

```python
import re

REG_RE = re.compile(r'^(-|abs\()?([vas])(\d+)\)?$')
RNG_RE = re.compile(r'^([vas])\[(\d+):(\d+)\]$')

def regs_of(op):
    op = op.strip()
    m = RNG_RE.match(op)
    if m:
        return [f"{m.group(1)}{i}" for i in range(int(m.group(2)), int(m.group(3)) + 1)]
    m = REG_RE.match(op)
    if m:
        return [f"{m.group(2)}{m.group(3)}"]
    if op in ("vcc", "exec", "m0"):
        return [op]
    if op in ("vcc_lo", "vcc_hi"):
        return ["vcc"]
    return []

TRANS = ("v_exp_f32", "v_log_f32", "v_rcp_f32", "v_rsq_f32", "v_sqrt_f32", "v_sin_f32", "v_cos_f32")

class Ins:
    __slots__ = ("text", "op", "kind", "rd", "wr", "srcc", "ab", "tok", "wide", "states")
    def __init__(self, text, tok=None):
        self.text = text
        self.tok = tok
        t = text.split(";")[0].strip()
        parts = t.split(None, 1)
        self.op = op = parts[0]
        rest = parts[1] if len(parts) > 1 else ""
        ops = [o.strip() for o in rest.split(",")] if rest else []
        if ops:
            last = ops[-1].split()
            ops[-1] = last[0] if last else ""
            mods = last[1:]
        else:
            mods = []
        self.rd = []; self.wr = []; self.srcc = []; self.ab = []; self.wide = False; self.states = 1
        R = regs_of
        if op.endswith(":") or op.startswith("."):
            self.kind = "label"; self.states = 0
        elif op.startswith("v_mfma"):
            self.kind = "mfma"
            self.wr = R(ops[0]); self.ab = R(ops[1]) + R(ops[2]); self.srcc = R(ops[3])
            self.rd = self.ab + self.srcc
        elif op.startswith("v_permlane"):
            self.kind = "valu"; self.wr = R(ops[0]) + R(ops[1]); self.rd = list(self.wr)
        elif op.startswith("v_cmp"):
            self.kind = "valu"; self.wr = R(ops[0]); self.rd = sum((R(o) for o in ops[1:]), [])
        elif op.startswith("v_"):
            self.kind = "valu"; self.wr = R(ops[0]); self.rd = sum((R(o) for o in ops[1:]), [])
            if op.startswith(("v_fmac", "v_pk_fmac")): self.rd += self.wr
            if "_co_" in op: self.wr = self.wr + R(ops[1])
        elif op.startswith("ds_read"):
            self.kind = "dsr"; self.wr = R(ops[0]); self.rd = R(ops[1])
        elif op.startswith("ds_"):
            self.kind = "dsw"; self.rd = sum((R(o) for o in ops), [])
        elif op.startswith("buffer_load"):
            if "lds" in mods:
                self.kind = "dma"; self.rd = sum((R(o) for o in ops), []) + ["m0"]
            else:
                self.kind = "vld"; self.wr = R(ops[0]); self.rd = sum((R(o) for o in ops[1:]), [])
        elif op.startswith("buffer_store") or op.startswith("buffer_atomic"):
            self.kind = "vst"; self.rd = sum((R(o) for o in ops), [])
            self.wide = op.endswith(("x3", "x4"))
            self.ab = R(ops[0])
            if op.startswith("buffer_atomic") and "sc0" in mods:
                self.kind = "vld"; self.wr = R(ops[0])
        elif op == "s_nop":
            self.kind = "nop"; self.states = int(ops[0], 0) + 1
        elif op == "s_waitcnt":
            self.kind = "wait"
        elif op.startswith(("s_load", "s_buffer_load", "s_memtime", "s_memrealtime")):
            self.kind = "smem"; self.wr = R(ops[0]); self.rd = sum((R(o) for o in ops[1:]), [])
        elif op.startswith(("s_cbranch", "s_branch", "s_barrier", "s_endpgm", "s_setprio", "s_sleep")):
            self.kind = "sctl"
        elif op.startswith(("s_cmp", "s_bitcmp")):
            self.kind = "salu"; self.rd = sum((R(o) for o in ops), [])
        elif op.startswith("s_"):
            self.kind = "salu"; self.wr = R(ops[0]); self.rd = sum((R(o) for o in ops[1:]), [])
            if "saveexec" in op: self.wr = self.wr + ["exec"]
        else:
            raise ValueError("unknown op: " + text)

class Token:
    pass

class Prog:
    def __init__(self):
        self.items = []
    def I(self, text, tok=None):
        for line in text.split("\n"):
            line = line.strip()
            if line:
                self.items.append(Ins(line, tok))
    def extend(self, lst):
        for x in lst:
            if isinstance(x, str): self.I(x)
            else: self.items.append(x)
    def wait_tok(self, *toks):
        self.items.append(("waittok", toks))
    def finalize(self):
        out = []
        lgkm = []
        smem_out = False
        vm = []
        hist = []
        def emit(ins):
            out.append(ins); hist.append(ins)
            if len(hist) > 40: del hist[0]
        def do_wait(vmn=None, lgn=None):
            nonlocal lgkm, vm, smem_out
            s = []
            if vmn is not None:
                vmn = min(vmn, 63); s.append(f"vmcnt({vmn})"); vm = vm[len(vm)-vmn:] if vmn else []
            if lgn is not None:
                if smem_out: lgn = 0
                lgn = min(lgn, 15); s.append(f"lgkmcnt({lgn})"); lgkm = lgkm[len(lgkm)-lgn:] if lgn else []
                if lgn == 0: smem_out = False
            emit(Ins("s_waitcnt " + " ".join(s)))
        for it in self.items:
            if isinstance(it, tuple):
                toks = set(id(t) for t in it[1])
                idx = [i for i, o in enumerate(vm) if o.tok is not None and id(o.tok) in toks]
                if idx: do_wait(vmn=len(vm) - 1 - max(idx))
                continue
            ins = it
            if ins.kind == "wait":
                m = re.search(r"vmcnt\((\d+)\)", ins.text)
                if m:
                    n = int(m.group(1)); vm = vm[len(vm)-n:] if n and n < len(vm) else ([] if n == 0 else vm)
                m = re.search(r"lgkmcnt\((\d+)\)", ins.text)
                if m:
                    n = int(m.group(1)); lgkm = lgkm[len(lgkm)-n:] if n and n < len(lgkm) else ([] if n == 0 else lgkm)
                    if n == 0: smem_out = False
                emit(ins); continue
            touch = set(ins.rd) | set(ins.wr)
            vi = [i for i, o in enumerate(vm) if touch & set(o.wr)]
            li = [i for i, o in enumerate(lgkm) if touch & set(o.wr)]
            if vi or li:
                do_wait(vmn=(len(vm) - 1 - max(vi)) if vi else None, lgn=(len(lgkm) - 1 - max(li)) if li else None)
            need = 0
            dist = 0
            rd = set(ins.rd); wr = set(ins.wr)
            for p in reversed(hist):
                req = 0
                pw = set(p.wr)
                if p.kind == "valu":
                    pv = {r for r in pw if r[0] in "va" and r != "vcc"}
                    ps = pw - pv
                    if ins.kind == "mfma" and pv & rd: req = max(req, 2)
                    if ins.op.startswith("v_permlane") and pv & rd: req = max(req, 2)
                    if ins.op.startswith(("v_readfirstlane", "v_readlane")) and pv & rd: req = max(req, 1)
                    if "dpp" in ins.text and pv & rd: req = max(req, 2)
                    if p.op.startswith(TRANS) and ins.kind in ("valu",) and pv & rd: req = max(req, 1)
                    if p.op.startswith(TRANS) and ins.kind in ("dsw", "vst") and pv & rd: req = max(req, 1)
                    if ins.kind in ("dma", "vld", "vst") and ps & rd: req = max(req, 5)
                    if ins.kind == "valu" and ps & rd: req = max(req, 2)
                    if ins.kind in ("salu", "smem") and ps & rd: req = max(req, 3)
                if p.kind == "mfma":
                    big = "32x32" in p.op
                    if ins.kind == "mfma":
                        if pw & set(ins.ab): req = max(req, 12 if big else 8)
                        if pw & set(ins.srcc) and list(p.wr) != list(ins.srcc): req = max(req, 10 if big else 6)
                        if pw & wr and list(p.wr) != list(ins.srcc): req = max(req, 12 if big else 8)
                    elif ins.kind in ("valu", "dsr", "dsw", "vld", "vst", "dma"):
                        if pw & (rd | wr): req = max(req, 12 if big else 8)
                    if ins.kind in ("valu", "dsr", "vld") and set(p.srcc) & wr: req = max(req, 7 if big else 3)
                if p.kind == "salu" and "m0" in pw and ins.kind == "dma": req = max(req, 1)
                if p.kind == "vst" and p.wide and set(p.ab) & wr: req = max(req, 2)
                need = max(need, req - dist)
                dist += p.states
                if dist >= 20: break
            while need > 0:
                k = min(need, 16)
                emit(Ins(f"s_nop {k-1}")); need -= k
            emit(ins)
            if ins.kind in ("dsr", "dsw"): lgkm.append(ins)
            elif ins.kind == "smem": lgkm.append(ins); smem_out = True
            elif ins.kind in ("dma", "vld", "vst"): vm.append(ins)
        return out
    def text(self):
        return "\n".join(("" if i.kind == "label" else "    ") + i.text for i in self.finalize()) + "\n"

def interleave(main, fill, lead=0):
    out = []
    n = len(main); m = len(fill)
    j = 0
    for i, x in enumerate(main):
        out.append(x)
        tgt = (m * (i + 1) + n - 1) // n if n else m
        while j < min(tgt, m):
            out.append(fill[j]); j += 1
    out.extend(fill[j:])
    flat = []
    for x in out:
        if isinstance(x, list): flat.extend(x)
        else: flat.append(x)
    return flat

KD = """.p2align 6
.amdhsa_kernel {name}
  .amdhsa_next_free_vgpr {vgpr}
  .amdhsa_next_free_sgpr {sgpr}
  .amdhsa_accum_offset {acc}
  .amdhsa_group_segment_fixed_size 0
  .amdhsa_kernarg_size 64
  .amdhsa_user_sgpr_count 2
  .amdhsa_user_sgpr_kernarg_segment_ptr 1
  .amdhsa_system_sgpr_workgroup_id_x 1
.end_amdhsa_kernel
"""
```

```python
import sys
sys.path.insert(0, "work")
from asmfw import *

REG = 40960
NSLOT = 10
O_OFF = 0x0
P_OFF = 0x400000
T_OFF = 0x1000000
CSC = 0x3e0293ee
import struct, math
CSC = struct.unpack("<I", struct.pack("<f", math.log2(math.e)/math.sqrt(128.0)))[0]

def vr(b, n=4): return f"v[{b}:{b+n-1}]"
def ar(b, n=4): return f"a[{b}:{b+n-1}]"

class Loader:
    def __init__(self, seq, emit_fn):
        self.seq = list(seq); self.pos = 0
        self.free = list(range(NSLOT))
        self.slot = {}; self.tok = {}
        self.emit_fn = emit_fn
    def release(self, key):
        self.free.append(self.slot[key])
    def issue(self, maxn=99):
        out = []
        while self.free and self.pos < len(self.seq) and maxn > 0:
            key = self.seq[self.pos]; self.pos += 1
            s = self.free.pop(0)
            self.slot[key] = s; self.tok[key] = Token()
            out += self.emit_fn(key, s, self.tok[key])
            maxn -= 1
        return out

def stamp(P, prof, i):
    if prof:
        P.I(f"s_memrealtime s[{70+2*i}:{71+2*i}]")
        P.I("s_waitcnt lgkmcnt(0)")

def stamp_store(P, prof, n, base):
    if not prof: return
    P.I(f"s_add_u32 s96, s18, {base}\ns_addc_u32 s97, s19, 0\ns_mov_b32 s98, 0x100000\ns_mov_b32 s99, 0x20000")
    P.I("s_lshl_b32 s3, s2, 8\ns_lshl_b32 s40, s42, 6\ns_add_u32 s3, s3, s40\nv_mov_b32 v1, 0")
    for i in range(n):
        P.I(f"v_mov_b32 v2, s{70+2*i}")
        P.I(f"buffer_store_dword v2, v1, s[96:99], s3 offen offset:{4*i}")

def gemm_phase(P, LD, aW, aX, acc, FB, wkey, xkey, after_barrier=None, nst=16):
    def mf(s):
        b = FB + 40*(s & 1); L = []
        for ks in range(2):
            for qt in range(3):
                for t in range(2):
                    d = vr(acc + (t*3+qt)*4)
                    c = "0" if (s == 0 and ks == 0) else d
                    L.append(f"v_mfma_f32_16x16x32_bf16 {d}, {ar(b + (ks*2+t)*4)}, {ar(b + 16 + (ks*3+qt)*4)}, {c}")
        return L
    for s in range(nst):
        P.wait_tok(LD.tok[wkey(s)], LD.tok[xkey(s >> 1)])
        P.I("s_waitcnt lgkmcnt(0)")
        P.I("s_barrier")
        if s > 0:
            LD.release(wkey(s-1))
            if s % 2 == 0: LD.release(xkey((s-1) >> 1))
        b = FB + 40*(s & 1)
        rd = []
        sw = LD.slot[wkey(s)]; sx = LD.slot[xkey(s >> 1)]
        for ks in range(2):
            for t in range(2):
                for j in range(2):
                    rd.append(f"ds_read_b64_tr_b16 {ar(b + (ks*2+t)*4 + 2*j, 2)}, v{aW[ks][t]} offset:{sw*4096 + j*1024}")
            for qt in range(3):
                rd.append(f"ds_read_b128 {ar(b + 16 + (ks*3+qt)*4)}, v{aX[(s&1)*2+ks]} offset:{sx*4096 + qt*1024}")
        dm = LD.issue()
        extra = after_barrier(s) if after_barrier else []
        fill = interleave(rd, dm) if len(rd) >= len(dm) else interleave(dm, rd)
        if s > 0: P.extend(interleave(mf(s-1), fill + extra))
        else: P.extend(fill + extra)
    P.extend(mf(nst-1))

def common_prologue(P, nwg, endlab):
    P.I(f"s_cmp_ge_u32 s2, {nwg}\ns_cbranch_scc1 {endlab}")
    P.I("s_load_dwordx16 s[4:19], s[0:1], 0")
    P.I("v_lshrrev_b32 v1, 6, v0\nv_and_b32 v2, 63, v0")
    P.I("v_readfirstlane_b32 s42, v1")
    P.I("v_lshrrev_b32 v3, 4, v2\nv_and_b32 v4, 15, v2")
    P.I(f"s_mul_i32 s43, s42, {REG}")

def tr_addr_gemm(P, aW):
    P.I("v_bfe_u32 v5, v2, 2, 3")
    P.I("v_and_b32 v6, 3, v2\nv_lshlrev_b32 v6, 3, v6")
    P.I("v_bfe_u32 v7, v2, 2, 2\nv_bfe_u32 v8, v2, 4, 1\nv_lshl_add_u32 v7, v8, 3, v7\nv_lshl_add_u32 v6, v7, 8, v6")
    P.I(f"v_lshrrev_b32 v7, 5, v2\nv_mul_u32_u24 v7, {REG}, v7\nv_add_u32 v6, v6, v7")
    P.I("s_lshl_b32 s44, s42, 1")
    for t in range(2):
        P.I(f"s_add_u32 s45, s44, {t}\nv_xor_b32 v7, s45, v5\nv_lshl_add_u32 v{aW[0][t]}, v7, 5, v6")
        P.I(f"v_add_u32 v{aW[1][t]}, {2*REG}, v{aW[0][t]}")

def gen_A(prof=False, nt="nt"):
    P = Prog()
    common_prologue(P, 256, "L_endA")
    P.I("s_and_b32 s46, s2, 7\ns_lshr_b32 s47, s2, 3")
    P.I("s_lshr_b32 s48, s46, 1")
    P.I("s_and_b32 s49, s47, 3")
    P.I("s_and_b32 s50, s46, 1\ns_lshl_b32 s50, s50, 2\ns_add_u32 s50, s50, s49")
    P.I("s_lshr_b32 s51, s47, 2")
    P.I("s_lshl_b32 s52, s48, 3\ns_add_u32 s52, s52, s51")
    P.I("s_lshl_b32 s53, s49, 1\ns_add_u32 s53, s53, s51\ns_and_b32 s53, s53, 7")
    P.I("s_lshl_b32 s54, s53, 20\ns_lshl_b32 s55, s53, 8\ns_lshl_b32 s56, s51, 15")
    vW = [10, 11, 12, 13]; vX = [14, 15, 16]; vK = [17, 18, 19, 20]; vV = [21, 22]
    aW = [[23, 24], [25, 26]]; aX = [27, 28, 29, 30]; aK = [31, 32, 33, 34]
    P.I("s_lshl_b32 s44, s42, 2\nv_add_u32 v5, s44, v3\nv_xor_b32 v6, v4, v5\nv_lshlrev_b32 v6, 4, v6\nv_lshl_add_u32 v14, v5, 11, v6")
    P.I(f"v_add_u32 v15, {16*2048-1024}, v14\nv_add_u32 v16, {2*(16*2048-1024)}, v14")
    P.I("s_lshl_b32 s44, s42, 4\nv_add_u32 v5, s44, v3\nv_lshlrev_b32 v5, 13, v5\nv_lshlrev_b32 v6, 1, v3\nv_xor_b32 v6, v4, v6")
    P.I("v_lshl_add_u32 v10, v6, 4, v5\nv_xor_b32 v6, 8, v6\nv_lshl_add_u32 v12, v6, 4, v5")
    P.I(f"v_add_u32 v11, {4*8192-1024}, v10\nv_add_u32 v13, {3*(4*8192-1024)}, v12\nv_add_u32 v12, {2*(4*8192-1024)}, v12")
    P.I("s_waitcnt lgkmcnt(0)")
    stamp(P, prof, 0)
    P.I("s_mul_i32 s44, s50, 98304\ns_add_u32 s20, s4, s44\ns_addc_u32 s21, s5, 0\ns_mov_b32 s22, 98304\ns_mov_b32 s23, 0x20000")
    P.I("s_lshl_b32 s44, s52, 8\ns_add_u32 s24, s10, s44\ns_addc_u32 s25, s11, 0\ns_sub_u32 s26, 0x800000, s44\ns_mov_b32 s27, 0x20000")
    def emit(key, slot, tok):
        kind, i = key
        if kind == "R": return []
        g = [f"s_add_u32 m0, s43, {slot*4096}"]
        if kind == "W":
            g += [f"s_add_u32 s57, s54, {i*524288}", "s_and_b32 s57, s57, 0x7fffff"]
            ld = [Ins(f"buffer_load_dwordx4 v{vW[p]}, s[24:27], s57 offen offset:{p*1024} {nt} lds", tok) for p in range(4)]
        elif kind == "X":
            g += [f"s_add_u32 s57, s55, {i*256}", "s_and_b32 s57, s57, 0x7ff"]
            ld = [Ins(f"buffer_load_dwordx4 v{vX[p]}, s[20:23], s57 offen offset:{p*1024} {nt} lds", tok) for p in range(3)]
        elif kind == "K":
            g += [f"s_add_u32 s57, s56, {(i>>1)*32768 + (i&1)*4096}", "s_and_b32 s57, s57, 0x3ffff"]
            ld = [Ins(f"buffer_load_dwordx4 v{vK[p]}, s[28:31], s57 offen offset:{p*1024} {nt} lds", tok) for p in range(4)]
        elif kind == "V":
            g += [f"s_add_u32 s57, s56, {(i>>1)*32768 + (i&1)*4096}", "s_and_b32 s57, s57, 0x3ffff"]
            ld = [Ins(f"buffer_load_dwordx4 v{vV[p&1]}, s[32:35], s57 offen offset:{p*1024} {nt} lds", tok) for p in range(4)]
        return [g + [ld[0]]] + ld[1:]
    seq = []
    for i in range(8): seq += [("X", i), ("W", 2*i), ("W", 2*i+1)]
    ks = [("K", i) for i in range(16)]
    seq += ks[:7] + [("R", 0)] + ks[7:] + [("V", i) for i in range(16)] + [("R", i) for i in range(1, 6)]
    LD = Loader(seq, emit)
    P.extend(sum(([x] if not isinstance(x, list) else x for x in LD.issue()), []))
    P.I("s_lshl_b32 s44, s50, 2\ns_add_u32 s44, s44, s48\ns_lshl_b32 s45, s44, 18")
    P.I("s_add_u32 s28, s6, s45\ns_addc_u32 s29, s7, 0\ns_mov_b32 s30, 0x40000\ns_mov_b32 s31, 0x20000")
    P.I("s_add_u32 s32, s8, s45\ns_addc_u32 s33, s9, 0\ns_mov_b32 s34, 0x40000\ns_mov_b32 s35, 0x20000")
    P.I(f"s_lshl_b32 s44, s44, 3\ns_add_u32 s44, s44, s51\ns_mul_i32 s44, s44, 12288\ns_add_u32 s44, s44, {O_OFF}")
    P.I("s_add_u32 s36, s18, s44\ns_addc_u32 s37, s19, 0\ns_mov_b32 s38, 12288\ns_mov_b32 s39, 0x20000")
    tr_addr_gemm(P, aW)
    P.I(f"v_lshrrev_b32 v5, 2, v4\nv_mul_u32_u24 v5, {REG}, v5\nv_and_b32 v6, 3, v4\nv_lshl_add_u32 v5, v6, 8, v5")
    P.I("v_lshlrev_b32 v8, 8, v4\nv_add_u32 v8, s43, v8")
    for k in range(4):
        P.I(f"v_or_b32 v6, {4*k}, v3\nv_xor_b32 v6, v6, v4\nv_lshl_add_u32 v{aX[k]}, v6, 4, v5\nv_lshl_add_u32 v{aK[k]}, v6, 4, v8")
    P.I("s_lshl_b32 s44, s42, 13\nv_lshlrev_b32 v5, 8, v3\nv_add_u32 v5, s44, v5")
    for p in range(4):
        P.I(f"v_or_b32 v6, {4*p}, v3\nv_xor_b32 v6, v6, v4\nv_lshl_add_u32 v{vK[p]}, v6, 4, v5")
    P.I("v_lshlrev_b32 v6, 1, v3\nv_xor_b32 v6, v6, v4\nv_lshl_add_u32 v21, v6, 4, v5\nv_xor_b32 v6, 8, v6\nv_lshl_add_u32 v22, v6, 4, v5")
    P.I("v_mov_b32 v5, 0x3f803f80")
    for i in range(4): P.I(f"v_accvgpr_write_b32 a{132+i}, v5")
    ACC = 40; FB = 136
    gemm_phase(P, LD, aW, aX, ACC, FB, lambda s: ("W", s), lambda i: ("X", i))
    sq = LD.slot[("R", 0)]
    P.I("v_lshrrev_b32 v5, 5, v2\nv_lshl_add_u32 v5, v5, 4, v4\nv_lshlrev_b32 v5, 4, v5\nv_bfe_u32 v6, v2, 4, 1\nv_lshl_add_u32 v5, v6, 3, v5\nv_add_u32 v35, s43, v5")
    P.I(f"v_lshlrev_b32 v36, 4, v2\nv_add_u32 v37, {REG}, v36\nv_add_u32 v38, {2*REG}, v36\nv_add_u32 v39, {3*REG}, v36")
    for qt in range(3):
        for t in range(2):
            b = ACC + (t*3+qt)*4
            P.I(f"v_cvt_pk_bf16_f32 v{b}, v{b}, v{b+1}\nv_cvt_pk_bf16_f32 v{b+1}, v{b+2}, v{b+3}")
            P.I(f"ds_write_b64 v35, v[{b}:{b+1}] offset:{sq*4096 + qt*1024 + t*512}")
    stamp(P, prof, 1)
    P.I("s_waitcnt lgkmcnt(0)\ns_barrier")
    LD.release(("W", 15)); LD.release(("X", 7))
    rd = [f"ds_read_b128 {ar((k*3+qt)*4)}, v{36+k} offset:{sq*4096 + qt*1024}" for k in range(4) for qt in range(3)]
    P.extend(interleave(rd, LD.issue()))
    aV = list(range(23, 31))
    P.I("v_bfe_u32 v5, v2, 2, 3\nv_and_b32 v6, 3, v2\nv_lshlrev_b32 v6, 3, v6\nv_lshrrev_b32 v7, 2, v2\nv_lshl_add_u32 v6, v7, 8, v6\nv_add_u32 v6, s43, v6")
    P.I("s_lshl_b32 s44, s42, 1")
    for j in range(8):
        P.I(f"s_add_u32 s45, s44, {j}\ns_and_b32 s45, s45, 7\nv_xor_b32 v7, s45, v5\nv_lshl_add_u32 v{aV[j]}, v7, 5, v6")
    SB = 64
    def sreg(t, qt): return SB + ((t >> 1)*3 + qt)*8 + (t & 1)*4
    vM = [10, 11, 12]
    def qk(t):
        b = FB + 16*(t & 1); L = []
        for k in range(4):
            for qt in range(3):
                d = vr(sreg(t, qt))
                L.append(f"v_mfma_f32_16x16x32_bf16 {d}, {ar(b + 4*k)}, {ar((k*3+qt)*4)}, {'0' if k == 0 else d}")
        return L
    def mx(t):
        L = []
        for qt in range(3):
            s = sreg(t, qt)
            if t == 0: L += [f"v_max3_f32 v{vM[qt]}, v{s}, v{s+1}, v{s+2}", f"v_max_f32 v{vM[qt]}, v{vM[qt]}, v{s+3}"]
            else: L += [f"v_max3_f32 v{vM[qt]}, v{vM[qt]}, v{s}, v{s+1}", f"v_max3_f32 v{vM[qt]}, v{vM[qt]}, v{s+2}, v{s+3}"]
        return L
    def vreads(s):
        b = FB + 16 + 32*(s & 1)
        return [f"ds_read_b64_tr_b16 {ar(b + 4*j + 2*hf, 2)}, v{aV[j]} offset:{LD.slot[('V', 2*s+hf)]*4096}" for j in range(8) for hf in range(2)]
    for t in range(17):
        fill = []
        if t >= 1:
            P.I("s_waitcnt lgkmcnt(0)")
            LD.release(("K", t-1))
        if t == 1:
            P.I("s_barrier"); LD.release(("R", 0))
        if t < 16:
            P.wait_tok(LD.tok[("K", t)])
            b = FB + 16*(t & 1)
            fill += [f"ds_read_b128 {ar(b + 4*k)}, v{aK[k]} offset:{LD.slot[('K', t)]*4096}" for k in range(4)]
        fill += LD.issue()
        if t >= 2: fill = interleave(fill, mx(t-2)) if fill else mx(t-2)
        if t >= 1: P.extend(interleave(qk(t-1), fill))
        else: P.extend(interleave(fill, []))
    stamp(P, prof, 2)
    P.wait_tok(LD.tok[("V", 0)], LD.tok[("V", 1)])
    P.extend(vreads(0))
    P.extend(mx(15))
    P.I(f"s_mov_b32 s58, {CSC}")
    vN = [13, 14, 15]
    for sw in ("v_permlane32_swap_b32", "v_permlane16_swap_b32"):
        for qt in range(3): P.I(f"v_mov_b32 v{vN[qt]}, v{vM[qt]}")
        for qt in range(3): P.I(f"{sw} v{vM[qt]}, v{vN[qt]}")
        for qt in range(3): P.I(f"v_max_f32 v{vM[qt]}, v{vM[qt]}, v{vN[qt]}")
    for qt in range(3): P.I(f"v_mul_f32 v{vM[qt]}, s58, v{vM[qt]}")
    def sm(s):
        L = []
        for qt in range(3):
            b = SB + (s*3+qt)*8
            f = [f"v_fma_f32 v{b+i}, v{b+i}, s58, -v{vM[qt]}" for i in range(8)]
            e = [f"v_exp_f32 v{b+i}, v{b+i}" for i in range(8)]
            c = [f"v_cvt_pk_bf16_f32 v{b+i}, v{b+2*i}, v{b+2*i+1}" for i in range(4)]
            L += [f[0], f[1], e[0], f[2], e[1], f[3], e[2], f[4], e[3], c[0], f[5], e[4], f[6], e[5], c[1], f[7], e[6], e[7], c[2], c[3]]
        return L
    def oacc(j, qt):
        return vr(ACC + (j*3+qt)*4) if j < 2 else ar(48 + ((j-2)*3+qt)*4)
    def pv(s):
        b = FB + 16 + 32*(s & 1); L = []
        for j in range(8):
            for qt in range(3):
                d = oacc(j, qt)
                L.append(f"v_mfma_f32_16x16x32_bf16 {d}, {ar(b + 4*j)}, {vr(SB + (s*3+qt)*8)}, {'0' if s == 0 else d}")
        for qt in range(3):
            d = ar(120 + 4*qt)
            L.append(f"v_mfma_f32_16x16x32_bf16 {d}, a[132:135], {vr(SB + (s*3+qt)*8)}, {'0' if s == 0 else d}")
        return L
    P.extend(sm(0))
    for s in range(8):
        P.I("s_waitcnt lgkmcnt(0)")
        LD.release(("V", 2*s)); LD.release(("V", 2*s+1))
        if s < 7:
            dm = LD.issue()
            mem = dm + [("waittok", (LD.tok[("V", 2*s+2)], LD.tok[("V", 2*s+3)]))] + vreads(s+1)
            fill = interleave(sm(s+1), mem)
        else:
            fill = LD.issue()
        P.extend(interleave(pv(s), fill))
    stamp(P, prof, 3)
    rs = [LD.slot[("R", i)] for i in range(1, 6)]
    def toff(i): return rs[i >> 2]*4096 + (i & 3)*1024
    P.I("v_lshlrev_b32 v5, 4, v2\nv_add_u32 v16, s43, v5")
    for i in range(1, 4):
        P.I(f"s_sub_u32 s44, s42, {i}\ns_and_b32 s44, s44, 3\ns_mul_i32 s44, s44, {REG}\nv_add_u32 v{16+i}, s44, v5")
    for qt in range(3): P.I(f"v_accvgpr_read_b32 v{20+qt}, a{120+4*qt}")
    P.I(f"ds_write_b96 v16, v[10:12] offset:{toff(18)}")
    P.I(f"ds_write_b96 v16, v[20:22] offset:{toff(19)}")
    for j in range(2, 8):
        for qt in range(3):
            P.I(f"ds_write_b128 v16, {oacc(j, qt)} offset:{toff((j-2)*3+qt)}")
    P.I("s_waitcnt lgkmcnt(0)\ns_barrier")
    for i in range(1, 4):
        P.I(f"ds_read_b96 v[{64+8*i}:{66+8*i}], v{16+i} offset:{toff(18)}")
        P.I(f"ds_read_b96 v[{68+8*i}:{70+8*i}], v{16+i} offset:{toff(19)}")
    for i in range(1, 4):
        for t in range(2):
            for qt in range(3):
                P.I(f"ds_read_b128 {vr(96 + ((i-1)*6 + t*3+qt)*4)}, v{16+i} offset:{toff((2*i+t-2)*3+qt)}")
    for qt in range(3):
        m = [10+qt] + [64+8*i+qt for i in range(1, 4)]
        l = [20+qt] + [68+8*i+qt for i in range(1, 4)]
        P.I(f"v_max3_f32 v{13+qt}, v{m[0]}, v{m[1]}, v{m[2]}\nv_max_f32 v{13+qt}, v{13+qt}, v{m[3]}")
        for i in range(4): P.I(f"v_sub_f32 v{m[i]}, v{m[i]}, v{13+qt}")
        for i in range(4): P.I(f"v_exp_f32 v{m[i]}, v{m[i]}")
        P.I(f"v_mul_f32 v{13+qt}, v{m[0]}, v{l[0]}")
        for i in range(1, 4): P.I(f"v_fmac_f32 v{13+qt}, v{m[i]}, v{l[i]}")
        P.I(f"v_rcp_f32 v{13+qt}, v{13+qt}")
        for i in range(4): P.I(f"v_mul_f32 v{m[i]}, v{m[i]}, v{13+qt}")
    P.I("s_mul_i32 s44, s42, 3072")
    for qt in range(3):
        m = [10+qt] + [64+8*i+qt for i in range(1, 4)]
        for t in range(2):
            b = ACC + (t*3+qt)*4
            for r in range(4): P.I(f"v_mul_f32 v{b+r}, v{m[0]}, v{b+r}")
            for i in range(1, 4):
                for r in range(4): P.I(f"v_fmac_f32 v{b+r}, v{m[i]}, v{96 + ((i-1)*6 + t*3+qt)*4 + r}")
            P.I(f"v_cvt_pk_bf16_f32 v{176+4*qt+2*t}, v{b}, v{b+1}\nv_cvt_pk_bf16_f32 v{177+4*qt+2*t}, v{b+2}, v{b+3}")
        P.I(f"buffer_store_dwordx4 {vr(176+4*qt)}, v5, s[36:39], s44 offen offset:{qt*1024} sc1")
    stamp(P, prof, 4)
    stamp_store(P, prof, 5, T_OFF)
    P.I("L_endA:\ns_endpgm")
    return P

def gen_B(prof=False, nt="nt"):
    P = Prog()
    common_prologue(P, 256, "L_endB")
    P.I("s_and_b32 s46, s2, 7\ns_lshr_b32 s47, s2, 3")
    P.I("s_lshr_b32 s48, s46, 1")
    P.I("s_and_b32 s50, s47, 7")
    P.I("s_lshr_b32 s49, s47, 3")
    P.I("s_and_b32 s51, s46, 1\ns_lshl_b32 s51, s51, 2\ns_add_u32 s51, s51, s49")
    P.I("s_lshl_b32 s53, s49, 1\ns_add_u32 s53, s53, s50\ns_and_b32 s53, s53, 7")
    P.I("s_lshl_b32 s54, s53, 18")
    vW = [10, 11, 12, 13]; aW = [[23, 24], [25, 26]]; aX = [27, 28, 29, 30]
    P.I("s_lshr_b32 s44, s42, 1\ns_lshl_b32 s44, s44, 5\ns_and_b32 s45, s42, 1\ns_lshl_b32 s45, s45, 3\ns_add_u32 s44, s44, s45")
    P.I("v_add_u32 v5, s44, v3\nv_lshlrev_b32 v5, 11, v5\nv_lshlrev_b32 v6, 1, v3\nv_xor_b32 v6, v4, v6")
    P.I("v_lshl_add_u32 v10, v6, 4, v5\nv_xor_b32 v6, 8, v6\nv_lshl_add_u32 v12, v6, 4, v5")
    P.I(f"v_add_u32 v11, {16*2048-1024}, v10\nv_add_u32 v13, {20*2048-3072}, v12\nv_add_u32 v12, {4*2048-2048}, v12")
    P.I("s_mul_i32 s44, s42, 3072\nv_lshlrev_b32 v27, 4, v2\nv_add_u32 v14, s44, v27")
    P.I("s_waitcnt lgkmcnt(0)")
    stamp(P, prof, 0)
    P.I(f"s_lshl_b32 s44, s50, 2\ns_add_u32 s44, s44, s48\ns_mul_i32 s44, s44, 98304\ns_add_u32 s44, s44, {O_OFF}")
    P.I("s_add_u32 s20, s18, s44\ns_addc_u32 s21, s19, 0\ns_mov_b32 s22, 98304\ns_mov_b32 s23, 0x20000")
    P.I("s_lshl_b32 s44, s48, 21\ns_lshl_b32 s45, s51, 8\ns_add_u32 s44, s44, s45")
    P.I("s_add_u32 s24, s12, s44\ns_addc_u32 s25, s13, 0\ns_sub_u32 s26, 0x800000, s44\ns_mov_b32 s27, 0x20000")
    def emit(key, slot, tok):
        kind, i = key
        g = [f"s_add_u32 m0, s43, {slot*4096}"]
        if kind == "W":
            g += [f"s_add_u32 s57, s54, {i*131072}", "s_and_b32 s57, s57, 0x1fffff"]
            ld = [Ins(f"buffer_load_dwordx4 v{vW[p]}, s[24:27], s57 offen offset:{p*1024} {nt} lds", tok) for p in range(4)]
        else:
            g += [f"s_add_u32 s57, s53, {i}", "s_and_b32 s57, s57, 7", "s_mul_i32 s57, s57, 12288"]
            ld = [Ins(f"buffer_load_dwordx4 v14, s[20:23], s57 offen offset:{p*1024} lds", tok) for p in range(3)]
        return [g + [ld[0]]] + ld[1:]
    seq = []
    for i in range(8): seq += [("X", i), ("W", 2*i), ("W", 2*i+1)]
    LD = Loader(seq, emit)
    P.extend(sum(([x] if not isinstance(x, list) else x for x in LD.issue()), []))
    tr_addr_gemm(P, aW)
    for k in range(1, 4): P.I(f"v_add_u32 v{aX[k]}, {k*REG}, v27")
    P.I("s_lshl_b32 s44, s50, 3\ns_add_u32 s44, s44, s51\ns_lshl_b32 s44, s44, 2\ns_add_u32 s44, s44, s42\ns_lshl_b32 s44, s44, 2\ns_add_u32 s44, s44, s48")
    P.I(f"s_mul_i32 s44, s44, 6144\ns_add_u32 s44, s44, {P_OFF}")
    P.I("s_add_u32 s36, s18, s44\ns_addc_u32 s37, s19, 0\ns_mov_b32 s38, 6144\ns_mov_b32 s39, 0x20000")
    ACC = 40; FB = 0
    gemm_phase(P, LD, aW, aX, ACC, FB, lambda s: ("W", s), lambda i: ("X", i))
    stamp(P, prof, 1)
    P.I("s_mov_b32 s44, 3072")
    for t in range(2):
        for qt in range(3):
            P.I(f"buffer_store_dwordx4 {vr(ACC + (t*3+qt)*4)}, v27, s[36:39], {'0' if t == 0 else 's44'} offen offset:{qt*1024} sc1")
    stamp(P, prof, 2)
    stamp_store(P, prof, 3, T_OFF + 0x10000)
    P.I("L_endB:\ns_endpgm")
    return P

def gen_C(prof=False):
    P = Prog()
    common_prologue(P, 256, "L_endC")
    P.I("s_waitcnt lgkmcnt(0)")
    stamp(P, prof, 0)
    P.I(f"s_mul_i32 s44, s2, {4*6144}\ns_add_u32 s44, s44, {P_OFF}")
    P.I(f"s_add_u32 s20, s18, s44\ns_addc_u32 s21, s19, 0\ns_mov_b32 s22, {4*6144}\ns_mov_b32 s23, 0x20000")
    P.I("v_lshrrev_b32 v5, 5, v2\nv_mul_u32_u24 v5, 3072, v5\nv_bfe_u32 v6, v2, 4, 1\nv_lshl_add_u32 v5, v6, 9, v5\nv_lshl_add_u32 v5, v4, 4, v5")
    P.I("s_lshl_b32 s45, s42, 10")
    for i in range(4):
        P.I(f"buffer_load_dwordx4 {vr(8+8*i)}, v5, s[20:23], s45 offen")
        P.I(f"buffer_load_dwordx4 {vr(12+8*i)}, v5, s[20:23], s45 offen offset:256")
        if i < 3: P.I("s_add_u32 s45, s45, 6144")
    P.I("s_mov_b32 s24, s14\ns_mov_b32 s25, s15\ns_mov_b32 s26, 786432\ns_mov_b32 s27, 0x20000")
    P.I("s_lshr_b32 s44, s2, 5\ns_mul_i32 s44, s44, 48\ns_lshl_b32 s45, s42, 4\ns_add_u32 s44, s44, s45\ns_lshl_b32 s44, s44, 11")
    P.I("s_and_b32 s45, s2, 31\ns_lshl_b32 s45, s45, 6\ns_add_u32 s44, s44, s45")
    P.I("v_lshlrev_b32 v6, 11, v4\nv_lshl_add_u32 v6, v3, 4, v6")
    for r in range(8): P.I(f"v_add_f32 v{8+r}, v{8+r}, v{16+r}")
    for r in range(8): P.I(f"v_add_f32 v{24+r}, v{24+r}, v{32+r}")
    for r in range(8): P.I(f"v_add_f32 v{8+r}, v{8+r}, v{24+r}")
    for r in range(4): P.I(f"v_cvt_pk_bf16_f32 v{8+r}, v{8+2*r}, v{9+2*r}")
    P.I("buffer_store_dwordx4 v[8:11], v6, s[24:27], s44 offen")
    stamp(P, prof, 1)
    stamp_store(P, prof, 2, T_OFF + 0x20000)
    P.I("L_endC:\ns_endpgm")
    return P

HEADER = open("standalone__gqa_block_cached__near_ridge.s.ref").read().split("; Override")[0]

def build(prof=False, nt="nt"):
    ks = [("qattn_kernel", gen_A(prof, nt), 256, 163840, 512, 256), ("oproj_kernel", gen_B(prof, nt), 256, 163840, 512, 256), ("redu_kernel", gen_C(prof), 192, 0, 64, 64)]
    s = HEADER
    for n, p, blk, lds, vg, acc in ks:
        s += f"; @launch kernel={n} grid=(256,1,1) block=({blk},1,1) lds={lds}\n"
    s += '.amdgcn_target "amdgcn-amd-amdhsa--gfx950"\n.text\n'
    for n, p, blk, lds, vg, acc in ks:
        s += f".globl {n}\n.p2align 8\n.type {n},@function\n{n}:\n" + p.text()
    s += '.section .rodata,"a"\n'
    for n, p, blk, lds, vg, acc in ks:
        s += KD.format(name=n, vgpr=vg, sgpr=102, acc=acc).replace(".end_amdhsa_kernel", "  .amdhsa_float_denorm_mode_32 3\n.end_amdhsa_kernel")
    return s

if __name__ == "__main__":
    open("v1.s", "w").write(build())
    open("v1_prof.s", "w").write(build(prof=True))
    open("v1_def.s", "w").write(build(nt=""))
```
